```python
import torch

def _softmax(x, axis=-1):
    return torch.softmax(x, dim=axis)
def _gelu(x):
    return torch.nn.functional.gelu(x, approximate="tanh")
def _silu(x):
    return torch.nn.functional.silu(x)
def _sigmoid(x):
    return torch.sigmoid(x)
def _layernorm(x, axis=-1, eps=1e-5):
    m = x.mean(dim=axis, keepdim=True)
    v = x.var(dim=axis, keepdim=True, unbiased=False)
    return (x - m) / torch.sqrt(v + eps)
def _scatter_add(tgt, idx, src, axis=0):
    return tgt.clone().index_add_(axis, idx, src)
def _segment_sum(src, seg, n):
    out = torch.zeros((n,) + src.shape[1:], dtype=src.dtype)
    return out.index_add_(0, seg, src)
def _pad(x, pw):
    flat = tuple(v for pair in reversed(pw) for v in pair)
    return torch.nn.functional.pad(x, flat)

kernel_name = 'gated_mix__softmax_full_mha__linear_kernel_hedgehog__prompt'

def setup_inputs():

    _w = (lambda a: (lambda t: t.to(torch.bfloat16) if t.is_floating_point() else t)(torch.as_tensor(a)))
    def _A_setup():
        B, S, D = 1, 2048, 1024
        return {
            "x": _w((lambda *s: torch.randn(*s, dtype=torch.bfloat16) * 0.05)(B, S, D)),
            "wqkv": _w((lambda *s: torch.randn(*s, dtype=torch.bfloat16) * 3.2)(D, 3 * D)),
            "wo": _w((lambda *s: torch.randn(*s, dtype=torch.bfloat16) * 0.1)(D, D)),
        }
    _A_in = _A_setup()

    def _B_setup():
        B, S, D, H = 1, 2048, 1024, 32
        Dh = D // H
        return {
            "x": _w((lambda *s: torch.randn(*s, dtype=torch.bfloat16) * 0.05)(B, S, D)),
            "wqkv": _w((lambda *s: torch.randn(*s, dtype=torch.bfloat16) * 3.2)(D, 3 * D)),
            "w_phi": _w((lambda *s: torch.randn(*s, dtype=torch.bfloat16) * 3.2)(H, Dh, Dh) * (Dh ** -0.5)),
            "wo": _w((lambda *s: torch.randn(*s, dtype=torch.bfloat16) * 1.6)(D, D)),
        }
    _B_in = _B_setup()

    return {
        "A_x": _A_in["x"],
        "A_wqkv": _A_in["wqkv"],
        "A_wo": _A_in["wo"],
        "B_x": _B_in["x"],
        "B_wqkv": _B_in["wqkv"],
        "B_w_phi": _B_in["w_phi"],
        "B_wo": _B_in["wo"],
        "gate_w": _w((lambda *s: torch.randn(*s, dtype=torch.bfloat16) * 0.4)(1024) * 16.0),
    }

def reference(A_x, A_wqkv, A_wo, B_x, B_wqkv, B_w_phi, B_wo, gate_w):
    def _A_ref(x, wqkv, wo):
        B, S, D = x.shape
        H = 32; Dh = D // H
        qkv = (lambda x, *d: x.permute(*d))((x @ wqkv).reshape(B, S, 3, H, Dh), 2, 0, 3, 1, 4)
        q, k, v = qkv[0], qkv[1], qkv[2]
        scale = Dh ** -0.5
        scores = torch.einsum("bhqd,bhkd->bhqk", q, k) * scale
        p = _softmax(scores, axis=-1)
        o = torch.einsum("bhqk,bhkd->bhqd", p, v)
        return (lambda x, *d: x.permute(*d))(o, 0, 2, 1, 3).reshape(B, S, D) @ wo

    def _B_ref(x, wqkv, w_phi, wo):
        B, S, D = x.shape
        H = 32; Dh = D // H
        qkv = (lambda x, *d: x.permute(*d))((x @ wqkv).reshape(B, S, 3, H, Dh), 2, 0, 3, 1, 4)
        q, k, v = qkv[0], qkv[1], qkv[2]
        pq = torch.einsum("bhsd,hdf->bhsf", q, w_phi)
        pk = torch.einsum("bhsd,hdf->bhsf", k, w_phi)
        phi_q = torch.concatenate([_softmax(pq, axis=-1), _softmax(-pq, axis=-1)], axis=-1)
        phi_k = torch.concatenate([_softmax(pk, axis=-1), _softmax(-pk, axis=-1)], axis=-1)
        kv = torch.einsum("bhsf,bhsd->bhfd", phi_k, v)
        z  = torch.einsum("bhsf->bhf", phi_k)
        num = torch.einsum("bhqf,bhfd->bhqd", phi_q, kv)
        den = torch.einsum("bhqf,bhf->bhq", phi_q, z)[..., None] + 1e-6
        o = num / den
        return (lambda x, *d: x.permute(*d))(o, 0, 2, 1, 3).reshape(B, S, D) @ wo

    x = A_x
    g = _sigmoid((x * gate_w).sum(-1, keepdims=True))
    a = _A_ref(x, A_wqkv, A_wo)
    b = _B_ref(x, B_wqkv, B_w_phi, B_wo)
    return g * a + (1 - g) * b
```

```python
class Asm:
    def __init__(self):
        self.lines = []
        self.nlabel = 0
    def __call__(self, s):
        for ln in s.split("\n"):
            ln = ln.strip()
            if ln:
                self.lines.append(("" if ln.endswith(":") else "    ") + ln)
    def label(self, name):
        self.lines.append(name + ":")
    def newlabel(self, prefix="L"):
        self.nlabel += 1
        return f"{prefix}_{self.nlabel}"
    def text(self):
        return "\n".join(self.lines) + "\n"

def vr(b, n=1):
    return f"v{b}" if n == 1 else f"v[{b}:{b+n-1}]"
def ar(b, n=1):
    return f"a{b}" if n == 1 else f"a[{b}:{b+n-1}]"
def sr(b, n=1):
    return f"s{b}" if n == 1 else f"s[{b}:{b+n-1}]"

def interleave(primary, fillers, start=0, every=1, per=1):
    out = []
    fi = 0
    for i, p in enumerate(primary):
        out.append(p)
        if i >= start and (i - start) % every == 0:
            for _ in range(per):
                if fi < len(fillers):
                    out.append(fillers[fi]); fi += 1
    out += fillers[fi:]
    return out

def kernel_header(name):
    return f""".globl {name}
.p2align 8
.type {name},@function
{name}:
"""

def kernel_desc(name, nvgpr, accum, nsgpr=102):
    return f""".section .rodata,"a"
.p2align 6
.amdhsa_kernel {name}
  .amdhsa_next_free_vgpr {nvgpr}
  .amdhsa_next_free_sgpr {nsgpr}
  .amdhsa_accum_offset {accum}
  .amdhsa_group_segment_fixed_size 0
  .amdhsa_kernarg_size 88
  .amdhsa_user_sgpr_count 2
  .amdhsa_user_sgpr_kernarg_segment_ptr 1
  .amdhsa_system_sgpr_workgroup_id_x 1
.end_amdhsa_kernel
.text
"""
```

```python
import re

REG = re.compile(r"^(-|abs\()?\|?([vas])(\d+)\|?\)?$|^(-)?([vas])\[(\d+):(\d+)\]$")

def regs_of(tok):
    tok = tok.strip()
    m = re.match(r"^-?\|?([vas])(\d+)\|?$", tok)
    if m: return [(m.group(1), int(m.group(2)))]
    m = re.match(r"^-?([vas])\[(\d+):(\d+)\]$", tok)
    if m: return [(m.group(1), i) for i in range(int(m.group(2)), int(m.group(3)) + 1)]
    if tok == "vcc": return [("s", "vcc")]
    if tok == "exec": return [("s", "exec")]
    if tok == "m0": return [("s", "m0")]
    return []

TRANS = ("v_exp_f32", "v_log_f32", "v_rcp_f32", "v_rsq_f32", "v_sqrt_f32", "v_sin_f32", "v_cos_f32")

class I:
    def __init__(self, line):
        self.line = line
        s = line.split(";")[0].strip()
        self.label = s.endswith(":")
        self.op = ""; self.dst = []; self.src = []; self.srcC = []; self.srcAB = []
        self.kind = "other"; self.ws = 1
        if self.label or not s or s.startswith("."):
            self.ws = 0; self.kind = "none"; return
        parts = s.split(None, 1)
        op = self.op = parts[0]
        ops = [o.strip() for o in parts[1].split(",")] if len(parts) > 1 else []
        if ops:
            last = ops[-1].split()
            ops[-1] = last[0] if last else ""
            self.mods = last[1:]
        else:
            self.mods = []
        R = [regs_of(o) for o in ops]
        base = re.sub(r"_e(32|64)$|_dpp$|_sdwa$", "", op)
        self.base = base
        self.dpp = op.endswith("_dpp") or any(m.startswith(("quad_perm", "row_", "wave_")) for m in self.mods)
        if op == "s_nop":
            self.ws = int(ops[0], 0) + 1; self.kind = "nop"
        elif op.startswith("v_mfma"):
            self.kind = "mfma"; self.dst = R[0]; self.srcAB = R[1] + R[2]; self.srcC = R[3]; self.src = self.srcAB + self.srcC
            self.passes = 8 if "32x32x16" in op else 4
        elif op.startswith(("buffer_store", "global_store")):
            self.kind = "vmem"; self.src = sum(R, []); self.store = True
            self.data = R[0] if op.startswith("buffer_store") else R[1]
            self.wide = ("x3" in op or "x4" in op)
        elif op.startswith(("buffer_load", "global_load")):
            self.kind = "vmem"
            if "lds" in self.mods or "lds" in ops or op.startswith("global_load_lds"):
                self.src = sum(R, []) + [("s", "m0")]; self.ldsdma = True
            else:
                self.dst = R[0]; self.src = sum(R[1:], [])
        elif op.startswith(("buffer_atomic", "global_atomic")):
            self.kind = "vmem"; self.src = sum(R, [])
            if "sc0" in self.mods: self.dst = R[0]
        elif op.startswith(("buffer_wbl2", "buffer_inv")):
            self.kind = "vmem"
        elif op.startswith("ds_write"):
            self.kind = "ds"; self.src = sum(R, [])
        elif op.startswith(("ds_read", "ds_bpermute", "ds_swizzle", "ds_permute")):
            self.kind = "ds"; self.dst = R[0]; self.src = sum(R[1:], [])
        elif op.startswith("v_"):
            self.kind = "valu"
            if base.startswith("v_cmp"):
                self.dst = R[0]; self.src = sum(R[1:], [])
                if base.startswith("v_cmpx"): self.dst = self.dst + [("s", "exec")]
            elif base.startswith("v_permlane"):
                self.dst = R[0] + R[1]; self.src = R[0] + R[1]
            elif base in ("v_readfirstlane_b32", "v_readlane_b32"):
                self.dst = R[0]; self.src = sum(R[1:], [])
            elif base in ("v_add_co_u32", "v_sub_co_u32", "v_addc_co_u32", "v_subb_co_u32"):
                self.dst = R[0] + R[1]; self.src = sum(R[2:], [])
            else:
                self.dst = R[0]; self.src = sum(R[1:], [])
                if base.startswith("v_dot2"): self.ab = R[1] + R[2]
                if base in ("v_fmac_f32", "v_dot2c_f32_bf16", "v_writelane_b32") or self.dpp: self.src = self.src + R[0]
                if base == "v_cndmask_b32" and len(ops) == 3: self.src += [("s", "vcc")]
        elif op.startswith("s_"):
            self.kind = "salu"
            if op.startswith(("s_cmp", "s_cbranch", "s_branch", "s_waitcnt", "s_barrier", "s_endpgm", "s_setprio", "s_sleep")):
                self.src = sum(R, [])
            elif op.startswith("s_load") or op.startswith("s_memtime") or op.startswith("s_memrealtime"):
                self.dst = R[0] if R else []; self.src = sum(R[1:], [])
            else:
                self.dst = R[0] if R else []; self.src = sum(R[1:], [])
                if "saveexec" in op: self.dst = self.dst + [("s", "exec")]

def need(prod, cons):
    n = 0
    pd = set(prod.dst);
    if prod.kind == "valu":
        vd = {x for x in pd if x[0] in "va"}
        sd = {x for x in pd if x[0] == "s"}
        cs = set(cons.src)
        if cons.kind == "mfma" and vd & cs: n = max(n, 2)
        if cons.kind == "mfma" and ("s", "exec") in sd: n = max(n, 4)
        if cons.kind == "valu":
            if cons.base.startswith("v_permlane") and vd & cs: n = max(n, 2)
            if cons.dpp and vd & cs: n = max(n, 2)
            if cons.base in ("v_readlane_b32", "v_readfirstlane_b32") and vd & cs: n = max(n, 1)
            if prod.base in TRANS and vd & cs: n = max(n, 1)
            if sd & cs: n = max(n, 2)
            if cons.base in ("v_readlane_b32", "v_writelane_b32") and sd & cs: n = max(n, 4)
            if ("s", "exec") in sd and (cons.dpp): n = max(n, 5)
            if ("s", "exec") in sd and cons.base in ("v_readlane_b32", "v_readfirstlane_b32", "v_writelane_b32") : n = max(n, 4)
        if prod.base.startswith("v_dot2") and vd & (cs | set(cons.dst)):
            same = cons.kind == "valu" and cons.base == prod.base
            srcc_only = same and not (vd & set(getattr(cons, "ab", [])))
            if not srcc_only: n = max(n, 3)
        if prod.base in TRANS and cons.kind in ("vmem", "ds") and vd & cs: n = max(n, 1)
        if cons.kind == "vmem" and sd & cs: n = max(n, 5)
        if cons.kind == "salu" and sd & cs and prod.base in ("v_readfirstlane_b32", "v_readlane_b32"): n = max(n, 1)
    if prod.kind == "salu":
        if ("s", "m0") in pd and getattr(cons, "ldsdma", False): n = max(n, 1)
    if prod.kind == "mfma":
        D = set(prod.dst); big = prod.passes == 8
        if cons.kind == "mfma":
            if D & set(cons.srcAB): n = max(n, 12 if big else 8)
            if D & set(cons.srcC):
                exact = cons.srcC == prod.dst and cons.passes == prod.passes
                if not exact: n = max(n, 10 if big else 6)
            if D & set(cons.dst) and not (cons.dst == prod.dst and cons.passes == prod.passes) : n = max(n, 10 if big else 6)
        elif cons.kind in ("valu", "vmem", "ds"):
            if D & (set(cons.src) | set(cons.dst)): n = max(n, 12 if big else 8)
        if cons.kind == "valu" and set(prod.srcC) & set(cons.dst): n = max(n, 7 if big else 3)
    if prod.kind == "vmem" and getattr(prod, "store", False) and getattr(prod, "wide", False):
        if set(prod.data) & set(cons.dst): n = max(n, 2 if cons.kind == "valu" else 1)
    return n

MAXW = 20
def fix(text, verbose=False):
    lines = text.split("\n")
    ins = [I(l) for l in lines]
    labels = {}
    for idx, i in enumerate(ins):
        if i.label: labels[i.line.strip()[:-1]] = idx
    pad = [0] * len(ins)
    def scan_back(seq_before, cons_idx):
        c = ins[cons_idx]; dist = pad[cons_idx]; worst = 0
        for pidx in reversed(seq_before):
            p = ins[pidx]
            if p.kind == "none": continue
            n = need(p, c)
            if n > dist: worst = max(worst, n - dist)
            dist += p.ws + pad[pidx]
            if dist >= MAXW: break
        return worst
    real = [k for k, i in enumerate(ins) if i.kind != "none"]
    from collections import defaultdict
    srcs = defaultdict(list)
    for bpos, b in enumerate(real):
        ib = ins[b]
        if ib.op.startswith(("s_cbranch", "s_branch")):
            srcs[ib.line.split(";")[0].split()[-1]].append(bpos)
    changed = True; rounds = 0
    while changed and rounds < 5:
        changed = False; rounds += 1
        for pos, k in enumerate(real):
            prevs = [real[max(0, pos - MAXW - 2):pos]]
            j = k - 1
            while j >= 0 and ins[j].kind == "none":
                if ins[j].label:
                    name = ins[j].line.strip()[:-1]
                    for bpos in srcs[name]:
                        prevs.append(real[max(0, bpos - MAXW - 1):bpos + 1])
                j -= 1
            w = 0
            for sq in prevs:
                w = max(w, scan_back(sq, k))
            back = 0; j = k - 1; between = []
            while j >= 0 and back < MAXW:
                if ins[j].label:
                    name = ins[j].line.strip()[:-1]
                    for bpos in srcs[name]:
                        sq = real[max(0, bpos - MAXW - 1):bpos + 1] + list(reversed(between))
                        w = max(w, scan_back(sq, k))
                elif ins[j].kind != "none":
                    between.append(j); back += ins[j].ws + pad[j]
                j -= 1
            if w > 0:
                pad[k] += w; changed = True
    out = []; nins = 0
    for k, l in enumerate(lines):
        w = pad[k]
        while w > 0:
            n = min(w, 16); out.append(f"    s_nop {n-1}"); w -= n; nins += 1
            if verbose: print("hazard pad before:", l.strip(), n)
        out.append(l)
    return "\n".join(out), nins
```

```python
from asmlib import *

MB = 1 << 20
WS_QF, WS_KV, WS_PQ, WS_KVP, WS_ZP, WS_G, WS_KVF, WS_ZF, WS_OC = 0, 4*MB, 12*MB, 20*MB, 24*MB, 25*MB, 26*MB, 27*MB, 32*MB
WS_STAMP = 200 * MB
XRING, XSLOT = 0, 16384
WRING, WSLOT = 49152, 24576
MISC1 = WRING + 4 * WSLOT
LDS1 = MISC1 + 8192
LOG2E = 0x3fb8aa3b
QSCALE = 0x3e8293ee

def wg_decode(A, sHP, sJ, sT):
    A(f"""
    s_and_b32 s{sT}, s2, 7
    s_lshr_b32 s{sJ}, s2, 3
    s_and_b32 s{sHP}, s{sJ}, 1
    s_lshr_b32 s{sJ}, s{sJ}, 1
    s_lshl_b32 s{sT}, s{sT}, 1
    s_add_u32 s{sHP}, s{sHP}, s{sT}
    """)

def srd(A, b, lo, hi, size):
    A(f"s_mov_b32 s{b}, s{lo}\ns_mov_b32 s{b+1}, s{hi}\ns_mov_b32 s{b+2}, {hex(size)}\ns_mov_b32 s{b+3}, 0x20000")

def stamp_out(A, name, vlane, sW, stamps, base):
    A("s_waitcnt vmcnt(0) lgkmcnt(0)")
    ref = stamps[0]
    for i, sp in enumerate(stamps[1:4]):
        A(f"s_sub_u32 s{sp}, s{sp}, s{ref}\nv_mov_b32 v{24+i}, s{sp}")
    for i in range(len(stamps[1:4]), 4): A(f"v_mov_b32 v{24+i}, 0")
    A(f"""
    s_lshl_b32 s48, s2, 3
    s_add_u32 s48, s48, s{sW}
    s_lshl_b32 s48, s48, 4
    s_add_u32 s48, s48, {base}
    v_mov_b32 v28, s48
    v_cmp_eq_u32 vcc, 0, v{vlane}
    s_and_saveexec_b64 s[50:51], vcc
    s_cbranch_execz L_end_{name}
    buffer_store_dwordx4 v[24:27], v28, s[20:23], 0 offen
    """)

def feature_map(A, src, XF, WP, P, E1, PH, M):
    A(f"s_mov_b32 s53, {hex(LOG2E)}")
    for k in range(16): A(f"v_mul_f32 v{src+k}, s53, v{src+k}")
    for k in range(8): A(f"v_cvt_pk_bf16_f32 v{XF+k}, v{src+2*k}, v{src+2*k+1}")
    A(f"v_mfma_f32_32x32x16_bf16 v[{P}:{P+15}], v[{WP}:{WP+3}], v[{XF}:{XF+3}], 0")
    A(f"v_mfma_f32_32x32x16_bf16 v[{P}:{P+15}], v[{WP+4}:{WP+7}], v[{XF+4}:{XF+7}], v[{P}:{P+15}]")
    mx, mn = M, M + 2
    A(f"v_max3_f32 v{mx}, v{P}, v{P+1}, v{P+2}")
    A(f"v_min3_f32 v{mn}, v{P}, v{P+1}, v{P+2}")
    for k in range(3, 15, 2):
        A(f"v_max3_f32 v{mx}, v{mx}, v{P+k}, v{P+k+1}")
        A(f"v_min3_f32 v{mn}, v{mn}, v{P+k}, v{P+k+1}")
    A(f"v_max_f32 v{mx}, v{mx}, v{P+15}")
    A(f"v_min_f32 v{mn}, v{mn}, v{P+15}")
    A(f"v_mov_b32 v{mx+1}, v{mx}\nv_mov_b32 v{mn+1}, v{mn}")
    A(f"v_permlane32_swap_b32 v{mx}, v{mx+1}\nv_permlane32_swap_b32 v{mn}, v{mn+1}")
    A(f"v_max_f32 v{mx}, v{mx}, v{mx+1}\nv_min_f32 v{mn}, v{mn}, v{mn+1}")
    A(f"v_mov_b32 v{mx+1}, v{mx}\nv_mov_b32 v{mn+1}, v{mn}")
    for k in range(0, 16, 2):
        A(f"v_pk_add_f32 v[{E1+k}:{E1+k+1}], v[{P+k}:{P+k+1}], v[{mx}:{mx+1}] neg_lo:[0,1] neg_hi:[0,1]")
    for k in range(0, 16, 2):
        A(f"v_pk_add_f32 v[{P+k}:{P+k+1}], v[{mn}:{mn+1}], v[{P+k}:{P+k+1}] neg_lo:[0,1] neg_hi:[0,1]")
    for k in range(16): A(f"v_exp_f32 v{E1+k}, v{E1+k}")
    for k in range(16): A(f"v_exp_f32 v{P+k}, v{P+k}")
    sp, sm = M + 4, M + 6
    t1, t2 = M + 8, M + 10
    for (S, T, X) in ((sp, t1, E1), (sm, t2, P)):
        A(f"v_pk_add_f32 v[{S}:{S+1}], v[{X}:{X+1}], v[{X+2}:{X+3}]")
        A(f"v_pk_add_f32 v[{T}:{T+1}], v[{X+4}:{X+5}], v[{X+6}:{X+7}]")
        A(f"v_pk_add_f32 v[{S}:{S+1}], v[{S}:{S+1}], v[{X+8}:{X+9}]")
        A(f"v_pk_add_f32 v[{T}:{T+1}], v[{T}:{T+1}], v[{X+10}:{X+11}]")
        A(f"v_pk_add_f32 v[{S}:{S+1}], v[{S}:{S+1}], v[{X+12}:{X+13}]")
        A(f"v_pk_add_f32 v[{T}:{T+1}], v[{T}:{T+1}], v[{X+14}:{X+15}]")
        A(f"v_pk_add_f32 v[{S}:{S+1}], v[{S}:{S+1}], v[{T}:{T+1}]")
        A(f"v_add_f32 v{S}, v{S}, v{S+1}")
        A(f"v_mov_b32 v{S+1}, v{S}")
    A(f"v_permlane32_swap_b32 v{sp}, v{sp+1}\nv_permlane32_swap_b32 v{sm}, v{sm+1}")
    A(f"v_add_f32 v{sp}, v{sp}, v{sp+1}\nv_add_f32 v{sm}, v{sm}, v{sm+1}")
    A(f"v_rcp_f32 v{sp}, v{sp}\nv_rcp_f32 v{sm}, v{sm}")
    A(f"v_mov_b32 v{sp+1}, v{sp}\nv_mov_b32 v{sm+1}, v{sm}")
    for k in range(0, 16, 2):
        A(f"v_pk_mul_f32 v[{E1+k}:{E1+k+1}], v[{E1+k}:{E1+k+1}], v[{sp}:{sp+1}]")
        A(f"v_pk_mul_f32 v[{P+k}:{P+k+1}], v[{P+k}:{P+k+1}], v[{sm}:{sm+1}]")
    for k in range(8): A(f"v_cvt_pk_bf16_f32 v{PH+k}, v{E1+2*k}, v{E1+2*k+1}")
    for k in range(8): A(f"v_cvt_pk_bf16_f32 v{PH+8+k}, v{P+2*k}, v{P+2*k+1}")

def gen_k1(name="k1_kernel", stamp=False, nb0=2):
    A = Asm()
    NST = 32
    L = 1; vOffW = 2; vOffX = 8; vXl = 10; vXa = 14; vWl = 18; vWa = 19; T0, T1, T2 = 20, 21, 22
    vGa = 23; vG = 30
    ACC = 32
    F = [128, 152]
    sW, sHP, sJ, sBR, sP, sTG = 28, 29, 30, 31, 32, 33
    sWcur, sWnxt, sXfree, sXnxt, sKW, sKX, sCnt, sT, sMW, sMX = 34, 35, 36, 37, 38, 39, 44, 45, 46, 47
    nW, nX = 6, 2
    A(f"""
    s_cmp_ge_u32 s2, 256
    s_cbranch_scc1 L_end_{name}
    s_load_dwordx2 s[4:5], s[0:1], 0
    s_load_dwordx2 s[6:7], s[0:1], 8
    s_load_dwordx2 s[40:41], s[0:1], 32
    s_load_dwordx2 s[42:43], s[0:1], 80
    s_load_dwordx2 s[54:55], s[0:1], 40
    s_load_dwordx2 s[56:57], s[0:1], 56
    v_and_b32 v{L}, 63, v0
    v_lshrrev_b32 v{T0}, 6, v0
    v_readfirstlane_b32 s{sW}, v{T0}
    """)
    wg_decode(A, sHP, sJ, sT)
    A(f"""
    s_lshr_b32 s{sBR}, s{sW}, 2
    s_bfe_u32 s{sP}, s{sW}, 0x10001
    s_and_b32 s{sTG}, s{sW}, 1
    s_waitcnt lgkmcnt(0)
    """)
    srd(A, 8, 4, 5, 0x400000); srd(A, 12, 6, 7, 0x600000); srd(A, 16, 40, 41, 0x600000); srd(A, 20, 42, 43, 0x10000000)
    if stamp: A("s_memtime s[60:61]")
    A(f"""
    v_and_b32 v{T0}, 31, v{L}
    v_lshrrev_b32 v{T1}, 5, v{L}
    v_bfe_u32 v{T2}, v{L}, 1, 3
    v_xor_b32 v{T1}, v{T1}, v{T2}
    v_lshlrev_b32 v{T1}, 4, v{T1}
    v_lshl_add_u32 v{T0}, v{T0}, 7, v{T1}
    s_lshl_b32 s{sT}, s{sTG}, 13
    v_add_u32 v{vXl}, s{sT}, v{T0}
    v_xor_b32 v{vXl+1}, 32, v{vXl}
    v_xor_b32 v{vXl+2}, 64, v{vXl}
    v_xor_b32 v{vXl+3}, 96, v{vXl}
    v_lshrrev_b32 v{T0}, 5, v{L}
    v_lshlrev_b32 v{T0}, 10, v{T0}
    v_bfe_u32 v{T1}, v{L}, 2, 2
    v_lshl_add_u32 v{T0}, v{T1}, 7, v{T0}
    v_bfe_u32 v{T1}, v{L}, 4, 1
    v_lshlrev_b32 v{T1}, 1, v{T1}
    v_bfe_u32 v{T2}, v{L}, 1, 1
    v_or_b32 v{T1}, v{T1}, v{T2}
    s_lshl_b32 s{sT}, s{sP}, 2
    v_or_b32 v{T1}, s{sT}, v{T1}
    v_bfe_u32 v{T2}, v{L}, 3, 1
    v_lshlrev_b32 v{T2}, 2, v{T2}
    v_xor_b32 v{T1}, v{T1}, v{T2}
    v_lshl_add_u32 v{T0}, v{T1}, 4, v{T0}
    v_and_b32 v{T1}, 1, v{L}
    v_lshl_add_u32 v{T0}, v{T1}, 3, v{T0}
    s_mul_i32 s{sT}, s{sBR}, 12288
    s_add_u32 s{sT}, s{sT}, {WRING}
    v_add_u32 v{vWl}, s{sT}, v{T0}
    v_lshrrev_b32 v{T0}, 5, v{L}
    v_lshlrev_b32 v{T0}, 4, v{T0}
    v_add_u32 v{vGa}, {MISC1}, v{T0}
    """)

    def dmaW():
        out = []
        for i in range(nW):
            if i == 4: out += ["s_add_u32 m0, m0, 4096", "s_nop 0"]
            out.append(f"buffer_load_dwordx4 v{vOffW+i}, s[24:27], s{sKW} offen offset:{1024*(i%4)} lds")
        return out
    def dmaX():
        return [f"buffer_load_dwordx4 v{vOffX+q}, s[8:11], s{sKX} offen offset:{1024*q} lds" for q in range(nX)]

    def reads(buf, sx, sw, gate, goff):
        base = F[buf]
        xr = [f"ds_read_b128 v[{base+4*m}:{base+4*m+3}], v{vXa+sx} offset:{m*4096}" for m in range(2)]
        wr = []
        for t in range(3):
            d = base + 8 + 4 * t
            wr.append([f"ds_read_b64_tr_b16 v[{d}:{d+1}], v{vWa} offset:{t*4096+sw*2048}",
                       f"ds_read_b64_tr_b16 v[{d+2}:{d+3}], v{vWa} offset:{t*4096+sw*2048+512}"])
        out = [xr[0]] + wr[0] + [xr[1]] + wr[1] + wr[2]
        if gate: out.append(f"ds_read_b128 v[{base+20}:{base+23}], v{vGa} offset:{goff}")
        return out

    def mfmas(buf, gate):
        base = F[buf]; out = []
        for t in range(3):
            for m in range(2):
                acc = ACC + 16 * (t * 2 + m)
                xa = f"v[{base+4*m}:{base+4*m+3}]"
                wa = f"v[{base+8+4*t}:{base+8+4*t+3}]"
                a_, b_ = (xa, wa) if t == 2 else (wa, xa)
                out.append(f"v_mfma_f32_32x32x16_bf16 v[{acc}:{acc+15}], {a_}, {b_}, v[{acc}:{acc+15}]")
        return out
    def dots(buf):
        base = F[buf]
        return [f"v_dot2_f32_bf16 v{vG+m}, v{base+4*m+q}, v{base+20+q}, v{vG+m}" for q in range(4) for m in range(2)]

    def cnt(s): return (nW if s <= 27 else 0) + (nX if s <= 26 else 0)

    def stage(i, dmaer, generic):
        e = i & 1
        gate = not dmaer
        last = (not generic) and i == NST - 1
        ga = interleave(mfmas(0, gate), reads(1, 2*e+1, 1, gate, (2*e+1)*32), start=0, every=1, per=2)
        if gate: ga = ga + dots(0)
        for l in ga: A(l)
        mb = mfmas(1, gate)
        A("s_waitcnt lgkmcnt(0)")
        if last:
            for l in mb: A(l)
            if gate:
                for l in dots(1): A(l)
            return
        for l in mb[:nb0]: A(l)
        A(f"v_add_u32 v{vWa}, s{sWnxt}, v{vWl}")
        if e == 1:
            for s in range(4): A(f"v_add_u32 v{vXa+s}, s{sXnxt}, v{vXl+s}")
        if dmaer:
            vm = 2 * (nW + nX) if generic else cnt(i-2) + cnt(i-1)
            A(f"s_waitcnt vmcnt({vm})")
        if gate:
            for l in dots(1): A(l)
            if e == 1: A(f"v_add_u32 v{vGa}, 128, v{vGa}")
        A("s_barrier")
        doW = generic or i <= 27
        doX = generic or i <= 26
        fill = reads(0, 2*(1-e), 0, gate, (2*(1-e))*32 )
        d = []
        if dmaer:
            if doW: d += [f"s_add_u32 m0, s{sWcur}, s{sMW}", "s_nop 0"] + dmaW()
            if doX:
                d += [f"s_add_u32 m0, s{sXfree}, s{sMX}"]
                d += ["s_add_u32 m0, m0, 8192", "s_nop 0"] if e == 0 else ["s_nop 0"]
                d += dmaX()
        rest = mb[nb0:]
        fillers = fill + d
        per_ = max(1, (len(fillers) + len(rest) - 1) // max(len(rest), 1))
        for l in interleave(rest, fillers, start=0, every=1, per=per_): A(l)
        if dmaer:
            A(f"s_add_u32 s{sKW}, s{sKW}, {32*6144}")
            A(f"s_add_u32 s{sKX}, s{sKX}, {64*2048 if e == 1 else (128 - 64*2048) & 0xffffffff}")
        A(f"""
        s_mov_b32 s{sWcur}, s{sWnxt}
        s_add_u32 s{sWnxt}, s{sWnxt}, {WSLOT}
        s_cmp_eq_u32 s{sWnxt}, {4*WSLOT}
        s_cselect_b32 s{sWnxt}, 0, s{sWnxt}
        """)
        sx = sXfree if e == 0 else sXnxt
        A(f"""
        s_add_u32 s{sx}, s{sx}, {XSLOT}
        s_cmp_eq_u32 s{sx}, {3*XSLOT}
        s_cselect_b32 s{sx}, 0, s{sx}
        s_waitcnt lgkmcnt(0)
        """)

    def body(dmaer, tag):
        gate = not dmaer
        A(f"""
        s_mov_b32 s{sWcur}, 0
        s_mov_b32 s{sWnxt}, {WSLOT}
        s_mov_b32 s{sXfree}, {2*XSLOT}
        s_mov_b32 s{sXnxt}, {XSLOT}
        v_mov_b32 v{vWa}, v{vWl}
        """)
        for s in range(4): A(f"v_mov_b32 v{vXa+s}, v{vXl+s}")
        for k in range(96): A(f"v_mov_b32 v{ACC+k}, 0")
        A(f"s_waitcnt vmcnt({3*(nW+nX) if dmaer else 0})")
        A("s_barrier")
        if stamp: A("s_memtime s[62:63]")
        for l in reads(0, 0, 0, gate, 0): A(l)
        A("s_waitcnt lgkmcnt(0)")
        A(f"s_mov_b32 s{sCnt}, 13")
        lp = f"L_loop_{tag}_{name}"
        A.label(lp)
        stage(0, dmaer, True)
        stage(1, dmaer, True)
        A(f"s_sub_u32 s{sCnt}, s{sCnt}, 1\ns_cmp_lg_u32 s{sCnt}, 0\ns_cbranch_scc1 {lp}")
        for i in range(26, NST): stage(i, dmaer, False)

    lB = f"L_B_{name}"
    A(f"s_cmp_ge_u32 s{sW}, 4\ns_cbranch_scc1 {lB}")
    A(f"""
    v_lshrrev_b32 v{T0}, 3, v{L}
    s_movk_i32 s{sT}, 6144
    v_mul_lo_u32 v{T0}, v{T0}, s{sT}
    v_and_b32 v{T1}, 7, v{L}
    v_bfe_u32 v{T2}, v{L}, 4, 1
    v_lshlrev_b32 v{T2}, 2, v{T2}
    v_xor_b32 v{T1}, v{T1}, v{T2}
    v_lshl_add_u32 v{T0}, v{T1}, 4, v{T0}
    s_lshl_b32 s{sT}, s{sHP}, 7
    v_add_u32 v{T0}, s{sT}, v{T0}
    s_cmp_lt_u32 s{sW}, 2
    s_cselect_b32 s24, s12, s16
    s_cselect_b32 s25, s13, s17
    s_mov_b32 s26, 0x600000
    s_mov_b32 s27, 0x20000
    s_and_b32 s48, s{sW}, 1
    s_mul_i32 s{sMW}, s{sW}, 6144
    s_add_u32 s{sMW}, s{sMW}, {WRING}
    """)
    for i in range(nW):
        offs = [((6*u+i) & 3) * 8 * 6144 + ((6*u+i) >> 2) * 2048 - 1024 * (i % 4) for u in range(2)]
        A(f"s_mov_b32 s49, {offs[0]}\ns_cmp_eq_u32 s48, 1\ns_cselect_b32 s49, {offs[1]}, s49\nv_add_u32 v{vOffW+i}, s49, v{T0}")
    for q in range(nX):
        A(f"""
        s_lshl_b32 s48, s{sW}, 1
        s_add_u32 s48, s48, {q}
        s_lshl_b32 s49, s48, 2
        v_lshrrev_b32 v{T0}, 4, v{L}
        v_add_u32 v{T0}, s49, v{T0}
        v_and_b32 v{T0}, 7, v{T0}
        v_and_b32 v{T1}, 7, v{L}
        v_xor_b32 v{T0}, v{T0}, v{T1}
        v_lshlrev_b32 v{T0}, 4, v{T0}
        v_lshrrev_b32 v{T1}, 3, v{L}
        s_lshl_b32 s48, s48, 3
        s_lshl_b32 s49, s{sJ}, 7
        s_add_u32 s48, s48, s49
        v_add_u32 v{T1}, s48, v{T1}
        v_lshl_add_u32 v{T0}, v{T1}, 11, v{T0}
        v_subrev_u32 v{vOffX+q}, {1024*q}, v{T0}
        """)
    A(f"s_lshl_b32 s{sMX}, s{sW}, 11\ns_mov_b32 s{sKW}, 0\ns_mov_b32 s{sKX}, 0")
    for vs in range(-5, 0):
        if vs >= -4:
            A(f"s_add_u32 m0, s{sMW}, {(vs+4)*WSLOT}\ns_nop 0")
            for l in dmaW(): A(l)
            A(f"s_add_u32 s{sKW}, s{sKW}, {32*6144}")
        half = 0 if vs % 2 != 0 else 1
        slab = (vs + 5) // 2
        A(f"s_add_u32 m0, s{sMX}, {slab*XSLOT + half*8192}\ns_nop 0")
        for l in dmaX(): A(l)
        A(f"s_add_u32 s{sKX}, s{sKX}, {64*2048 if half == 0 else (128 - 64*2048) & 0xffffffff}")
        if vs == -4: A("s_barrier")
    body(True, "A")
    A("s_nop 7\ns_barrier")
    if stamp: A("s_memtime s[64:65]")
    A(f"""
    s_lshl_b32 s48, s{sHP}, 1
    s_add_u32 s48, s48, s{sP}
    s_lshl_b32 s48, s48, 6
    s_lshl_b32 s49, s{sJ}, 2
    s_add_u32 s48, s48, s49
    s_lshl_b32 s49, s{sTG}, 1
    s_add_u32 s48, s48, s49
    s_lshl_b32 s49, s48, 11
    s_lshl_b32 s50, s48, 12
    s_add_u32 s50, s50, {WS_KV}
    v_lshlrev_b32 v{T0}, 4, v{L}
    s_mov_b32 s52, {hex(QSCALE)}
    """)
    tmps = [24, 128, 136, 144, 152, 160]
    n = 0
    for t in (1, 2, 0):
        for m in range(2):
            acc = ACC + 16 * (t * 2 + m); tmp = tmps[n]; n += 1
            if t == 0:
                for k in range(16): A(f"v_mul_f32 v{acc+k}, s52, v{acc+k}")
            for k in range(8): A(f"v_cvt_pk_bf16_f32 v{tmp+k}, v{acc+2*k}, v{acc+2*k+1}")
            if t == 0: so, o = "s49", m * 2048
            else: so, o = "s50", (t - 1) * 2048
            if t == 0:
                A(f"buffer_store_dwordx4 v[{tmp}:{tmp+3}], v{T0}, s[20:23], {so} offen offset:{o}")
                A(f"buffer_store_dwordx4 v[{tmp+4}:{tmp+7}], v{T0}, s[20:23], {so} offen offset:{o+1024}")
            else:
                if m == 1: A(f"s_add_u32 s51, s50, 4096"); so = "s51"
                A(f"buffer_store_dwordx4 v[{tmp}:{tmp+3}], v{T0}, s[20:23], {so} offen offset:{o}")
                A(f"buffer_store_dwordx4 v[{tmp+4}:{tmp+7}], v{T0}, s[20:23], {so} offen offset:{o+1024}")
    A("s_barrier")
    A(f"s_branch L_fin_{name}")

    A.label(lB)
    lskip = f"L_nomisc_{name}"
    A(f"""
    s_cmp_lg_u32 s{sW}, 4
    s_cbranch_scc1 {lskip}
    """)
    srd(A, 24, 56, 57, 2048)
    A(f"""
    v_lshlrev_b32 v{T0}, 4, v{L}
    s_mov_b32 m0, {MISC1}
    s_nop 0
    buffer_load_dwordx4 v{T0}, s[24:27], 0 offen lds
    buffer_load_dwordx4 v{T0}, s[24:27], 0 offen offset:1024 lds
    """)
    srd(A, 24, 54, 55, 65536)
    A(f"""
    s_lshl_b32 s48, s{sHP}, 12
    s_mov_b32 m0, {MISC1 + 2048}
    s_nop 0
    buffer_load_dwordx4 v{T0}, s[24:27], s48 offen lds
    buffer_load_dwordx4 v{T0}, s[24:27], s48 offen offset:1024 lds
    buffer_load_dwordx4 v{T0}, s[24:27], s48 offen offset:2048 lds
    buffer_load_dwordx4 v{T0}, s[24:27], s48 offen offset:3072 lds
    """)
    A.label(lskip)
    A(f"v_mov_b32 v{vG}, 0\nv_mov_b32 v{vG+1}, 0")
    A("s_barrier")
    body(False, "B")
    A("s_nop 7\ns_barrier")
    if stamp: A("s_memtime s[64:65]")
    WP, ID, ONE, XF, P, E1, PH, VF, M, DZ = 128, 136, 144, 148, 156, 172, 188, 204, 212, 224
    A(f"""
    v_mov_b32 v{T0}, v{vG}
    v_mov_b32 v{T1}, v{vG+1}
    v_permlane32_swap_b32 v{vG}, v{T0}
    v_permlane32_swap_b32 v{vG+1}, v{T1}
    v_add_f32 v{vG}, v{vG}, v{T0}
    v_add_f32 v{vG+1}, v{vG+1}, v{T1}
    s_mov_b32 s53, {hex(LOG2E)}
    v_mul_f32 v{vG}, s53, v{vG}
    v_mul_f32 v{vG+1}, s53, v{vG+1}
    v_exp_f32 v{vG}, -v{vG}
    v_exp_f32 v{vG+1}, -v{vG+1}
    v_add_f32 v{vG}, 1.0, v{vG}
    v_add_f32 v{vG+1}, 1.0, v{vG+1}
    v_rcp_f32 v{vG}, v{vG}
    v_rcp_f32 v{vG+1}, v{vG+1}
    s_lshl_b32 s48, s{sJ}, 7
    s_lshl_b32 s49, s{sTG}, 6
    s_add_u32 s48, s48, s49
    s_lshl_b32 s48, s48, 2
    s_add_u32 s48, s48, {WS_G}
    v_and_b32 v{T0}, 31, v{L}
    v_lshlrev_b32 v{T0}, 2, v{T0}
    buffer_store_dword v{vG}, v{T0}, s[20:23], s48 offen
    buffer_store_dword v{vG+1}, v{T0}, s[20:23], s48 offen offset:128
    """)
    A(f"""
    v_lshrrev_b32 v{T0}, 5, v{L}
    v_lshlrev_b32 v{T0}, 2, v{T0}
    v_bfe_u32 v{T1}, v{L}, 2, 2
    v_add_u32 v{T0}, v{T0}, v{T1}
    v_lshlrev_b32 v{T0}, 6, v{T0}
    v_bfe_u32 v{T1}, v{L}, 4, 1
    v_lshl_add_u32 v{T0}, v{T1}, 5, v{T0}
    v_and_b32 v{T1}, 3, v{L}
    v_lshl_add_u32 v{T0}, v{T1}, 3, v{T0}
    s_lshl_b32 s48, s{sP}, 11
    s_add_u32 s48, s48, {MISC1 + 2048}
    v_add_u32 v{T0}, s48, v{T0}
    ds_read_b64_tr_b16 v[{WP}:{WP+1}], v{T0}
    ds_read_b64_tr_b16 v[{WP+2}:{WP+3}], v{T0} offset:512
    ds_read_b64_tr_b16 v[{WP+4}:{WP+5}], v{T0} offset:1024
    ds_read_b64_tr_b16 v[{WP+6}:{WP+7}], v{T0} offset:1536
    """)
    A(f"""
    v_and_b32 v{T0}, 31, v{L}
    v_lshrrev_b32 v{T1}, 5, v{L}
    v_lshlrev_b32 v{T1}, 2, v{T1}
    v_sub_u32 v{T0}, v{T0}, v{T1}
    v_mov_b32 v{T2}, 0x3f80
    v_mov_b32 v{T2+1}, 0x3f800000
    """)
    assert T2 + 1 == vGa
    for s in range(2):
        for q in range(4):
            flo = 16*s + 8*(q >> 1) + 2*(q & 1)
            d = ID + 4*s + q
            A(f"""
            v_cmp_eq_u32 vcc, {flo}, v{T0}
            v_cndmask_b32 v{d}, 0, v{T2}, vcc
            v_cmp_eq_u32 vcc, {flo+1}, v{T0}
            v_cndmask_b32 v{d}, v{d}, v{T2+1}, vcc
            """)
    for q in range(4): A(f"v_mov_b32 v{ONE+q}, 0x3f803f80")
    A("s_waitcnt lgkmcnt(0)")
    A(f"""
    s_lshl_b32 s48, s{sHP}, 1
    s_add_u32 s48, s48, s{sP}
    s_lshl_b32 s54, s48, 4
    s_add_u32 s54, s54, s{sJ}
    s_lshl_b32 s48, s48, 6
    s_lshl_b32 s49, s{sJ}, 2
    s_add_u32 s48, s48, s49
    s_lshl_b32 s49, s{sTG}, 1
    s_add_u32 s48, s48, s49
    s_lshl_b32 s50, s48, 12
    s_add_u32 s50, s50, {WS_PQ}
    v_lshlrev_b32 v{L+1}, 4, v{L}
    """)
    vL16 = L + 1
    for m in range(2):
        feature_map(A, ACC + 16*m, XF, WP, P, E1, PH, M)
        if m == 1: A("s_add_u32 s50, s50, 4096")
        for s4 in range(4):
            A(f"buffer_store_dwordx4 v[{PH+4*s4}:{PH+4*s4+3}], v{vL16}, s[20:23], s50 offen offset:{1024*s4}")
    DKV = ACC
    for m in range(2):
        feature_map(A, ACC + 32 + 16*m, XF, WP, P, E1, PH, M)
        vacc = ACC + 64 + 16*m
        for k in range(8): A(f"v_cvt_pk_bf16_f32 v{VF+k}, v{vacc+2*k}, v{vacc+2*k+1}")
        for sg, D in ((0, P), (1, E1)):
            A(f"v_mfma_f32_32x32x16_bf16 v[{D}:{D+15}], v[{PH+8*sg}:{PH+8*sg+3}], v[{ID}:{ID+3}], 0")
            A(f"v_mfma_f32_32x32x16_bf16 v[{D}:{D+15}], v[{PH+8*sg+4}:{PH+8*sg+7}], v[{ID+4}:{ID+7}], v[{D}:{D+15}]")
        for sg, D in ((0, P), (1, E1)):
            for k in range(8): A(f"v_cvt_pk_bf16_f32 v{PH+8*sg+k}, v{D+2*k}, v{D+2*k+1}")
        for sg in range(2):
            for s in range(2):
                a_ = f"v[{PH+8*sg+4*s}:{PH+8*sg+4*s+3}]"
                c1 = "0" if (m == 0 and s == 0) else f"v[{DKV+16*sg}:{DKV+16*sg+15}]"
                c2 = "0" if (m == 0 and s == 0) else f"v[{DZ+16*sg}:{DZ+16*sg+15}]"
                A(f"v_mfma_f32_32x32x16_bf16 v[{DKV+16*sg}:{DKV+16*sg+15}], {a_}, v[{VF+4*s}:{VF+4*s+3}], {c1}")
                A(f"v_mfma_f32_32x32x16_bf16 v[{DZ+16*sg}:{DZ+16*sg+15}], {a_}, v[{ONE}:{ONE+3}], {c2}")
    lt1, lt0 = f"L_tg1_{name}", f"L_tgdone_{name}"
    A(f"""
    s_lshl_b32 s48, s{sP}, 14
    v_add_u32 v{T0}, s48, v{vL16}
    s_cmp_eq_u32 s{sTG}, 0
    s_cbranch_scc1 {lt1}
    """)
    for b in range(8): A(f"ds_write_b128 v{T0}, v[{DKV+4*b}:{DKV+4*b+3}] offset:{1024*b}")
    for b in range(8): A(f"ds_write_b128 v{T0}, v[{DZ+4*b}:{DZ+4*b+3}] offset:{8192+1024*b}")
    A(f"s_waitcnt lgkmcnt(0)\ns_barrier\ns_branch L_fin_{name}")
    A.label(lt1)
    A("s_barrier")
    T = P
    for b in range(8): A(f"ds_read_b128 v[{T+4*b}:{T+4*b+3}], v{T0} offset:{1024*b}")
    A("s_waitcnt lgkmcnt(0)")
    for k in range(32): A(f"v_add_f32 v{DKV+k}, v{DKV+k}, v{T+k}")
    for b in range(8): A(f"ds_read_b128 v[{T+4*b}:{T+4*b+3}], v{T0} offset:{8192+1024*b}")
    A(f"s_lshl_b32 s48, s54, 13\ns_add_u32 s48, s48, {WS_KVP}")
    for b in range(8):
        if b == 4: A("s_add_u32 s48, s48, 4096")
        A(f"buffer_store_dwordx4 v[{DKV+4*b}:{DKV+4*b+3}], v{vL16}, s[20:23], s48 offen offset:{1024*(b%4)}")
    A("s_waitcnt lgkmcnt(0)")
    for k in range(32): A(f"v_add_f32 v{DZ+k}, v{DZ+k}, v{T+k}")
    A(f"""
    s_lshl_b32 s48, s54, 8
    s_add_u32 s48, s48, {WS_ZP}
    v_lshrrev_b32 v{T0}, 5, v{L}
    v_lshlrev_b32 v{T0}, 6, v{T0}
    v_and_b32 v{T1}, 31, v{L}
    v_cmp_eq_u32 vcc, 0, v{T1}
    s_and_saveexec_b64 s[50:51], vcc
    """)
    for b in range(8):
        A(f"buffer_store_dwordx4 v[{DZ+4*b}:{DZ+4*b+3}], v{T0}, s[20:23], s48 offen offset:{(b >> 2)*128 + (b & 3)*16}")
    A("s_mov_b64 exec, s[50:51]")
    A.label(f"L_fin_{name}")
    if stamp:
        A("s_waitcnt vmcnt(0)\ns_memtime s[66:67]")
        stamp_out(A, name, L, sW, [60, 62, 64, 66], WS_STAMP)
    A.label(f"L_end_{name}")
    A("s_endpgm")
    return A.text(), 256, 256
```

```python
from asmlib import *
from kern1 import *

NS2 = 8
SLOT2 = 16384
MISC2 = NS2 * SLOT2
LDS2 = MISC2 + 1024
BIAS = 90.0
POLL_MAX = 200000

def f2h(x):
    import struct
    return hex(struct.unpack("<I", struct.pack("<f", x))[0])

def gen_k2(name="k2_kernel", stamp=False, fallback=True, force_fallback=False, exp=()):
    if exp: fallback = False
    A = Asm()
    L, L16, T0, T1, T2, T3 = 1, 2, 124, 125, 126, 127
    Q, SEL, NEGM, S, P, O, LA, KB, VB = 4, 12, 16, [32, 48], 64, 72, 88, [92, 100], [108, 116]
    vAcur, vAnxt, vAl = 128, 129, 130
    vG = 131
    PQ, KVF, ZF, NUM, DEN = 132, 148, 164, 180, 196
    SL = 132
    sW, sHP, sJ, sP, sQT, sH, sT, sC, sSlot, sSrc, sM0w, sCh, sFlagAt, sAtt = 28, 29, 30, 31, 32, 33, 34, 35, 36, 37, 38, 39, 44, 45
    A(f"""
    s_cmp_ge_u32 s2, 256
    s_cbranch_scc1 L_end_{name}
    s_load_dwordx2 s[42:43], s[0:1], 80
    s_load_dwordx2 s[40:41], s[0:1], 72
    v_and_b32 v{L}, 63, v0
    v_lshrrev_b32 v{T0}, 6, v0
    v_readfirstlane_b32 s{sW}, v{T0}
    """)
    wg_decode(A, sHP, sJ, sT)
    A(f"""
    s_lshr_b32 s{sP}, s{sW}, 2
    s_and_b32 s{sQT}, s{sW}, 3
    s_lshl_b32 s{sH}, s{sHP}, 1
    s_add_u32 s{sH}, s{sH}, s{sP}
    v_lshlrev_b32 v{L16}, 4, v{L}
    s_waitcnt lgkmcnt(0)
    """)
    srd(A, 20, 42, 43, 0x10000000)
    srd(A, 8, 40, 41, 256)
    if stamp: A("s_memtime s[60:61]")
    A(f"s_lshl_b32 s46, s{sJ}, 2\ns_add_u32 s46, s46, s{sQT}")
    lns = f"L_noslice_{name}"
    A(f"s_mov_b32 s{sFlagAt}, 0\ns_cmp_lg_u32 s{sW}, 0\ns_cbranch_scc1 {lns}")
    A(f"""
    s_mov_b32 s{sFlagAt}, 1
    v_lshrrev_b32 v{T0}, 5, v{L}
    s_lshl_b32 s48, s{sHP}, 1
    v_add_u32 v{T0}, s48, v{T0}
    v_lshlrev_b32 v{T1}, 17, v{T0}
    v_and_b32 v{T2}, 31, v{L}
    s_and_b32 s48, s{sJ}, 1
    s_lshl_b32 s48, s48, 5
    v_add_u32 v{T2}, s48, v{T2}
    v_lshl_add_u32 v{T1}, v{T2}, 4, v{T1}
    s_lshr_b32 s48, s{sJ}, 1
    s_lshl_b32 s48, s48, 10
    s_add_u32 s48, s48, {WS_KVP}
    """)
    for jj in range(16):
        A(f"buffer_load_dwordx4 v[{SL+4*jj}:{SL+4*jj+3}], v{T1}, s[20:23], s48 offen")
        if jj < 15: A("s_add_u32 s48, s48, 8192")
    A(f"""
    v_bfe_u32 v{T1}, v{L}, 4, 1
    s_lshl_b32 s48, s{sHP}, 1
    v_add_u32 v{T1}, s48, v{T1}
    v_lshlrev_b32 v{T1}, 12, v{T1}
    v_and_b32 v{T3}, 15, v{L}
    v_lshl_add_u32 v{T1}, v{T3}, 8, v{T1}
    s_lshl_b32 s48, s{sJ}, 4
    s_add_u32 s48, s48, {WS_ZP}
    buffer_load_dwordx4 v[{SL+64}:{SL+67}], v{T1}, s[20:23], s48 offen
    """)
    A.label(lns)
    A(f"""
    s_lshl_b32 s48, s{sH}, 18
    s_lshl_b32 s49, s{sQT}, 11
    s_add_u32 s48, s48, s49
    s_add_u32 s48, s48, {WS_KV}
    s_add_u32 s24, s42, s48
    s_addc_u32 s25, s43, 0
    s_mov_b32 s26, {0x40000}
    s_mov_b32 s27, 0x20000
    s_lshl_b32 s{sM0w}, s{sW}, 11
    """)
    for k in range(NS2): A(f"s_add_u32 s{72+k}, s{sM0w}, {k*SLOT2}")
    def kv_dma(slot_expr):
        return [slot_expr, "s_nop 0",
                f"buffer_load_dwordx4 v{L16}, s[24:27], s{sCh} offen lds",
                f"buffer_load_dwordx4 v{L16}, s[24:27], s{sCh} offen offset:1024 lds",
                f"s_add_u32 s{sCh}, s{sCh}, 8192", f"s_and_b32 s{sCh}, s{sCh}, 0x3ffff"]
    lstart = f"L_attempt_{name}"
    A(f"s_mov_b32 s{sAtt}, 0")
    A(f"""
    s_lshl_b32 s48, s{sH}, 6
    s_add_u32 s48, s48, s46
    s_lshl_b32 s48, s48, 11
    buffer_load_dwordx4 v[{Q}:{Q+3}], v{L16}, s[20:23], s48 offen
    buffer_load_dwordx4 v[{Q+4}:{Q+7}], v{L16}, s[20:23], s48 offen offset:1024
    """)
    def ring_prologue():
        A(f"s_lshl_b32 s{sCh}, s{sJ}, 14")
        for c in range(NS2 - 1):
            for l in kv_dma(f"s_add_u32 m0, s{sM0w}, {c*SLOT2}"): A(l)
    ring_prologue()
    A(f"""
    v_bfe_u32 v{T0}, v{L}, 4, 1
    v_bfe_u32 v{T1}, v{L}, 2, 1
    v_cmp_eq_u32 vcc, v{T0}, v{T1}
    v_mov_b32 v{T2}, 0x3f803f80
    v_cndmask_b32 v{SEL}, 0, v{T2}, vcc
    v_mov_b32 v{SEL+1}, v{SEL}
    v_mov_b32 v{SEL+2}, v{SEL}
    v_mov_b32 v{SEL+3}, v{SEL}
    s_lshl_b32 s48, s{sP}, 13
    v_add_u32 v{vAl}, s48, v{L16}
    """)
    lns2 = f"L_noslice2_{name}"
    A(f"s_cmp_lg_u32 s{sW}, 0\ns_cbranch_scc1 {lns2}")
    A(f"s_waitcnt vmcnt({2 + 2*(NS2-1)})")
    for jj in range(1, 16):
        A(f"v_pk_add_f32 v[{SL}:{SL+1}], v[{SL}:{SL+1}], v[{SL+4*jj}:{SL+4*jj+1}]")
        A(f"v_pk_add_f32 v[{SL+2}:{SL+3}], v[{SL+2}:{SL+3}], v[{SL+4*jj+2}:{SL+4*jj+3}]")
    A(f"""
    v_cvt_pk_bf16_f32 v{SL}, v{SL}, v{SL+1}
    v_cvt_pk_bf16_f32 v{SL+1}, v{SL+2}, v{SL+3}
    v_lshrrev_b32 v{T0}, 5, v{L}
    s_lshl_b32 s48, s{sHP}, 1
    v_add_u32 v{T0}, s48, v{T0}
    v_lshlrev_b32 v{T1}, 12, v{T0}
    v_and_b32 v{T2}, 31, v{L}
    s_and_b32 s48, s{sJ}, 1
    s_lshl_b32 s48, s48, 5
    v_add_u32 v{T2}, s48, v{T2}
    v_lshl_add_u32 v{T1}, v{T2}, 4, v{T1}
    s_lshr_b32 s48, s{sJ}, 2
    s_lshl_b32 s48, s48, 10
    s_bfe_u32 s49, s{sJ}, 0x10001
    s_lshl_b32 s49, s49, 3
    s_add_u32 s48, s48, s49
    s_add_u32 s48, s48, {WS_KVF}
    buffer_store_dwordx2 v[{SL}:{SL+1}], v{T1}, s[20:23], s48 offen sc1
    """)
    Z = SL + 64
    for sh in (1, 2, 4, 8):
        for e in range(4):
            A(f"v_add_f32_dpp v{Z+e}, v{Z+e}, v{Z+e} row_ror:{sh} row_mask:0xf bank_mask:0xf")
    A(f"""
    v_cvt_pk_bf16_f32 v{Z}, v{Z}, v{Z+1}
    v_cvt_pk_bf16_f32 v{Z+1}, v{Z+2}, v{Z+3}
    v_bfe_u32 v{T1}, v{L}, 4, 1
    s_lshl_b32 s48, s{sHP}, 1
    v_add_u32 v{T1}, s48, v{T1}
    v_lshlrev_b32 v{T1}, 7, v{T1}
    s_lshl_b32 s48, s{sJ}, 3
    s_add_u32 s48, s48, {WS_ZF}
    v_and_b32 v{T2}, 47, v{L}
    v_cmp_eq_u32 vcc, 0, v{T2}
    v_cmp_eq_u32 s[50:51], 16, v{L}
    s_or_b64 vcc, vcc, s[50:51]
    v_cmp_gt_u32 s[50:51], 32, v{L}
    s_and_b64 vcc, vcc, s[50:51]
    s_and_saveexec_b64 s[50:51], vcc
    buffer_store_dwordx2 v[{Z}:{Z+1}], v{T1}, s[20:23], s48 offen sc1
    s_mov_b64 exec, s[50:51]
    """)
    A.label(lns2)

    def kread(buf, va, off): return [f"ds_read_b128 v[{KB[buf]}:{KB[buf]+3}], v{va} offset:{off}", f"ds_read_b128 v[{KB[buf]+4}:{KB[buf]+7}], v{va} offset:{off+1024}"]
    def m32(d, a, b, c): return f"v_mfma_f32_32x32x16_bf16 v[{d}:{d+15}], v[{a}:{a+3}], v[{b}:{b+3}], {c}"
    def m16(d, a, b): return f"v_mfma_f32_16x16x32_bf16 v[{d}:{d+3}], v[{a}:{a+3}], v[{b}:{b+3}], v[{d}:{d+3}]"
    vr16 = lambda d: f"v[{d}:{d+15}]"

    A(f"s_waitcnt vmcnt({2*(NS2-1) - 2})")
    A("s_barrier")
    A(f"v_mov_b32 v{vAcur}, v{vAl}")
    for l in kread(0, vAcur, 0): A(l)
    A("s_waitcnt lgkmcnt(0)")
    A(m32(S[0], KB[0], Q, "0")); A(m32(S[0], KB[0]+4, Q+4, vr16(S[0])))
    A(f"v_max3_f32 v{T0}, v{S[0]}, v{S[0]+1}, v{S[0]+2}")
    for k in range(3, 15, 2): A(f"v_max3_f32 v{T0}, v{T0}, v{S[0]+k}, v{S[0]+k+1}")
    A(f"""
    v_max_f32 v{T0}, v{T0}, v{S[0]+15}
    v_mov_b32 v{T1}, v{T0}
    v_permlane32_swap_b32 v{T0}, v{T1}
    v_max_f32 v{T0}, v{T0}, v{T1}
    v_add_f32 v{T0}, {f2h(BIAS if not force_fallback else -200.0)}, v{T0}
    """)
    for k in range(16): A(f"v_sub_f32 v{NEGM+k}, 0, v{T0}")

    A.label(lstart)
    A(f"v_mov_b32 v{vAcur}, v{vAl}")
    for l in kread(0, vAcur, 0): A(l)
    for l in kread(1, vAcur, 4096): A(l)
    A(f"ds_read_b128 v[{VB[0]}:{VB[0]+3}], v{vAcur} offset:2048")
    A(f"ds_read_b128 v[{VB[0]+4}:{VB[0]+7}], v{vAcur} offset:3072")
    for k in range(16): A(f"v_mov_b32 v{O+k}, 0")
    for k in range(4): A(f"v_mov_b32 v{LA+k}, 0\nv_mov_b32 v{P+4+k}, 0\nv_mov_b32 v{VB[1]+4+k}, 0")
    A("s_waitcnt lgkmcnt(0)")
    A(m32(S[0], KB[0], Q, vr16(NEGM))); A(m32(S[0], KB[0]+4, Q+4, vr16(S[0])))
    A(f"v_add_u32 v{vAnxt}, 65536, v{vAl}\ns_mov_b32 s{sC}, 0")
    A("s_nop 7")
    if stamp: A("s_memtime s[68:69]")

    vA1 = vAnxt
    def lds(slot, off):
        slot %= NS2
        return (vAcur if slot < 4 else vA1, (slot % 4) * SLOT2 + off)
    def tile_iter(c, par, x1, x2):
        Sc, Sn = S[par], S[1-par]
        Kn, Kw, Vc, Vw = KB[1-par], KB[par], VB[par], VB[1-par]
        ka = lds(c + 1, 4096 * par)
        va = lds(c, 4096 + 2048) if par == 0 else lds(c + 1, 2048)
        ds = lambda d, a, o: f"ds_read_b128 v[{d}:{d+3}], v{a[0]} offset:{a[1]+o}"
        e = lambda k: f"v_exp_f32 v{Sc+k}, v{Sc+k}"
        cv = lambda k: f"v_cvt_pk_bf16_f32 v{P+k}, v{Sc+2*k}, v{Sc+2*k+1}"
        seq = ["s_waitcnt lgkmcnt(0)",
               m32(Sn, Kn, Q, vr16(NEGM)), ds(Kw, ka, 0), e(0), e(1), e(2), e(3),
               m32(O, Vw+4, P+4, vr16(O)), ds(Vw+4, va, 1024), cv(0), cv(1), e(4), e(5),
               m16(LA, SEL, P+4)] + x1 + [e(6), e(7),
               m32(Sn, Kn+4, Q+4, vr16(Sn)), ds(Kw+4, ka, 1024), cv(2), cv(3), e(8), e(9),
               m32(O, Vc, P, vr16(O)), ds(Vw, va, 0), e(10), e(11), e(12), cv(4),
               m16(LA, SEL, P)] + x2 + [e(13), cv(5), e(14), e(15), cv(6), cv(7)]
        if "nods" in exp: seq = [l for l in seq if not l.startswith("ds_read")]
        if "noexp" in exp: seq = [l for l in seq if not l.startswith("v_exp")]
        if "nom16" in exp: seq = [l for l in seq if not l.startswith("v_mfma_f32_16")]
        if "nomfma" in exp: seq = [l for l in seq if not l.startswith("v_mfma")]
        for l in seq: A(l)

    sOff = sCh
    def pair(c):
        dma = "nodma" not in exp
        if dma: A(f"s_waitcnt vmcnt({2*(NS2-3)})")
        if "nobar" not in exp: A("s_barrier")
        d0 = f"buffer_load_dwordx4 v{L16}, s[24:27], s{sOff} offen lds"
        d1 = f"buffer_load_dwordx4 v{L16}, s[24:27], s{sOff} offen offset:1024 lds"
        if dma:
            tile_iter(c, 0, [f"s_mov_b32 m0, s{72 + (c + NS2 - 1) % NS2}"], [d0])
            tile_iter(c, 1, [d1, f"s_add_u32 s{sOff}, s{sOff}, 8192"], [f"s_and_b32 s{sOff}, s{sOff}, 0x3ffff"])
        else:
            tile_iter(c, 0, [], []); tile_iter(c, 1, [], [])

    lp = f"L_main_{name}"
    A.label(lp)
    for c in range(NS2): pair(c)
    lnx = f"L_noextra_{name}"
    A(f"s_add_u32 s{sC}, s{sC}, 1\ns_cmp_lg_u32 s{sC}, 3\ns_cbranch_scc1 {lnx}")
    A(f"""
    s_lshl_b32 s48, s{sH}, 6
    s_add_u32 s48, s48, s46
    s_lshl_b32 s48, s48, 12
    s_add_u32 s48, s48, {WS_PQ}
    """)
    for s4 in range(4):
        A(f"buffer_load_dwordx4 v[{PQ+4*s4}:{PQ+4*s4+3}], v{L16}, s[20:23], s48 offen offset:{1024*s4}")
    A(f"""
    s_lshl_b32 s48, s46, 7
    s_add_u32 s48, s48, {WS_G}
    v_and_b32 v{T0}, 31, v{L}
    v_lshlrev_b32 v{T0}, 2, v{T0}
    buffer_load_dword v{vG}, v{T0}, s[20:23], s48 offen
    s_cmp_eq_u32 s{sFlagAt}, 1
    s_cbranch_scc0 {lnx}
    s_lshl_b32 s48, s{sHP}, 2
    v_mov_b32 v{T0}, s48
    v_mov_b32 v{T1}, 1
    v_cmp_eq_u32 vcc, 0, v{L}
    s_and_saveexec_b64 s[50:51], vcc
    buffer_atomic_add v{T1}, v{T0}, s[8:11], 0 offen sc1
    s_mov_b64 exec, s[50:51]
    """)
    A.label(lnx)
    A(f"s_cmp_lt_u32 s{sC}, 4\ns_cbranch_scc1 {lp}")
    A(m32(O, VB[1]+4, P+4, vr16(O)))
    A(m16(LA, SEL, P+4))
    if stamp: A("s_memtime s[62:63]")
    if fallback:
        lok = f"L_ok_{name}"
        A(f"""
        s_cmp_eq_u32 s{sAtt}, 1
        s_cbranch_scc1 {lok}
        v_mov_b32 v{T0}, 0
        """)
        for k in range(16): A(f"v_fma_f32 v{T0}, v{O+k}, 0, v{T0}")
        A(f"""
        v_mov_b32 v{T1}, {f2h(2.0**120)}
        v_cmp_nlt_f32 vcc, v{LA}, v{T1}
        v_cmp_neq_f32 s[50:51], 0, v{T0}
        s_or_b64 vcc, vcc, s[50:51]
        v_mov_b32 v{T1}, {f2h(2.0**-100)}
        v_cmp_ngt_f32 s[50:51], v{LA}, v{T1}
        s_or_b64 vcc, vcc, s[50:51]
        s_cmp_lg_u64 vcc, 0
        s_cselect_b32 s48, 1, 0
        v_mov_b32 v{T0}, s48
        s_lshl_b32 s49, s{sW}, 2
        s_add_u32 s49, s49, {MISC2}
        v_mov_b32 v{T1}, s49
        ds_write_b32 v{T1}, v{T0}
        s_waitcnt lgkmcnt(0)
        s_barrier
        v_mov_b32 v{T1}, {MISC2}
        ds_read_b128 v[{S[0]}:{S[0]+3}], v{T1}
        ds_read_b128 v[{S[0]+4}:{S[0]+7}], v{T1} offset:16
        s_waitcnt lgkmcnt(0)
        """)
        for k in range(1, 8): A(f"v_or_b32 v{S[0]}, v{S[0]}, v{S[0]+k}")
        A(f"""
        v_readfirstlane_b32 s48, v{S[0]}
        s_cmp_eq_u32 s48, 0
        s_cbranch_scc1 {lok}
        """)
        A(f"s_mov_b32 s{sAtt}, 1\ns_mov_b32 s{sFlagAt}, 0\ns_waitcnt vmcnt(0)\ns_barrier")
        ring_prologue()
        A(f"v_mov_b32 v{T2}, 0xff800000\ns_mov_b32 s{sC}, 0\ns_mov_b32 s{sSlot}, 0")
        lm = f"L_maxp_{name}"
        A.label(lm)
        A(f"""
        s_waitcnt vmcnt(0)
        s_barrier
        v_add_u32 v{vAcur}, s{sSlot}, v{vAl}
        """)
        for tl in range(2):
            for l in kread(0, vAcur, 4096*tl): A(l)
            A("s_waitcnt lgkmcnt(0)")
            A(m32(S[0], KB[0], Q, "0")); A(m32(S[0], KB[0]+4, Q+4, vr16(S[0])))
            for k in range(0, 16, 2): A(f"v_max3_f32 v{T2}, v{T2}, v{S[0]+k}, v{S[0]+k+1}")
        lnd = A.newlabel(f"L_nd_{name}")
        A(f"""
        s_barrier
        s_cmp_ge_u32 s{sC}, {32 - (NS2 - 1)}
        s_cbranch_scc1 {lnd}
        s_add_u32 s49, s{sC}, {NS2-1}
        s_and_b32 s49, s49, {NS2-1}
        s_lshl_b32 s49, s49, 14
        """)
        for l in kv_dma(f"s_add_u32 m0, s49, s{sM0w}"): A(l)
        A.label(lnd)
        A(f"""
        s_add_u32 s{sSlot}, s{sSlot}, {SLOT2}
        s_and_b32 s{sSlot}, s{sSlot}, {NS2*SLOT2 - 1}
        s_add_u32 s{sC}, s{sC}, 1
        s_cmp_lt_u32 s{sC}, 32
        s_cbranch_scc1 {lm}
        v_mov_b32 v{T1}, v{T2}
        v_permlane32_swap_b32 v{T2}, v{T1}
        v_max_f32 v{T0}, v{T2}, v{T1}
        """)
        for k in range(16): A(f"v_sub_f32 v{NEGM+k}, 0, v{T0}")
        A("s_waitcnt vmcnt(0)\ns_barrier")
        ring_prologue()
        A(f"s_waitcnt vmcnt({2*(NS2-1) - 2})\ns_barrier\ns_branch {lstart}")
        A.label(lok)
    A(f"""
    s_waitcnt vmcnt({2*NS2})
    v_rcp_f32 v{T0}, v{LA}
    v_mul_f32 v{T0}, v{T0}, v{vG}
    """)
    for k in range(16): A(f"v_mul_f32 v{O+k}, v{O+k}, v{T0}")
    for k in range(8): A(f"v_cvt_pk_bf16_f32 v{S[0]+k}, v{O+2*k}, v{O+2*k+1}")
    A(f"""
    s_lshl_b32 s47, s46, 17
    s_lshl_b32 s48, s{sH}, 11
    s_add_u32 s47, s47, s48
    s_add_u32 s47, s47, {WS_OC}
    buffer_store_dwordx4 v[{S[0]}:{S[0]+3}], v{L16}, s[20:23], s47 offen
    buffer_store_dwordx4 v[{S[0]+4}:{S[0]+7}], v{L16}, s[20:23], s47 offen offset:1024
    """)
    pm = 1 if exp else POLL_MAX
    lpoll = f"L_poll_{name}"
    A(f"s_lshl_b32 s48, s{sHP}, 2\nv_mov_b32 v{T0}, s48\ns_mov_b32 s49, 0")
    A.label(lpoll)
    A(f"""
    buffer_load_dword v{T1}, v{T0}, s[8:11], 0 offen sc1
    s_add_u32 s49, s49, 1
    s_waitcnt vmcnt(0)
    v_readfirstlane_b32 s48, v{T1}
    s_cmp_ge_u32 s49, {pm}
    s_cselect_b32 s48, 16, s48
    s_cmp_lt_u32 s48, 16
    s_cbranch_scc1 {lpoll}
    s_lshl_b32 s48, s{sH}, 12
    s_add_u32 s48, s48, {WS_KVF}
    """)
    for s4 in range(4):
        A(f"buffer_load_dwordx4 v[{KVF+4*s4}:{KVF+4*s4+3}], v{L16}, s[20:23], s48 offen offset:{1024*s4} sc1")
    A(f"""
    s_lshl_b32 s48, s{sH}, 7
    s_add_u32 s48, s48, {WS_ZF}
    v_lshrrev_b32 v{T0}, 5, v{L}
    v_lshlrev_b32 v{T0}, 5, v{T0}
    """)
    for s4 in range(4):
        A(f"buffer_load_dwordx4 v[{ZF+4*s4}:{ZF+4*s4+3}], v{T0}, s[20:23], s48 offen offset:{(s4 >> 1)*64 + (s4 & 1)*16} sc1")
    A("s_waitcnt vmcnt(0)")
    for s4 in range(4):
        A(m32(NUM, KVF+4*s4, PQ+4*s4, "0" if s4 == 0 else vr16(NUM)))
        A(m32(DEN, ZF+4*s4, PQ+4*s4, "0" if s4 == 0 else vr16(DEN)))
    A(f"""
    v_add_f32 v{T0}, {f2h(1e-6)}, v{DEN}
    v_rcp_f32 v{T0}, v{T0}
    v_sub_f32 v{T1}, 1.0, v{vG}
    v_mul_f32 v{T0}, v{T0}, v{T1}
    """)
    for k in range(16): A(f"v_mul_f32 v{NUM+k}, v{NUM+k}, v{T0}")
    for k in range(8): A(f"v_cvt_pk_bf16_f32 v{S[1]+k}, v{NUM+2*k}, v{NUM+2*k+1}")
    A(f"""
    s_add_u32 s47, s47, 65536
    buffer_store_dwordx4 v[{S[1]}:{S[1]+3}], v{L16}, s[20:23], s47 offen
    buffer_store_dwordx4 v[{S[1]+4}:{S[1]+7}], v{L16}, s[20:23], s47 offen offset:1024
    """)
    if stamp:
        A("s_memtime s[64:65]\ns_waitcnt vmcnt(0)\ns_memtime s[66:67]")
        stamp_out(A, name, L, sW, [60, 68, 62, 66], WS_STAMP + 65536)
    A.label(f"L_end_{name}")
    A("s_endpgm")
    return A.text(), 256, 256
```

```python
from asmlib import *
from kern1 import *

NS3 = 8
SLOT3 = 16384
LDS3 = NS3 * SLOT3

def gen_k3(name="k3_kernel", stamp=False):
    A = Asm()
    L, L16, T0, T1, T2 = 1, 2, 3, 4, 5
    vOffW = 6
    vA = [8, 9, 10, 11]
    ACC = 16
    WF = [48, 56]
    OC = 64
    sW, sRB, sCB, sTT, sBR, sT, sKW, sOC, sM0w = 28, 29, 30, 31, 32, 33, 34, 35, 36
    NST = 16
    A(f"""
    s_cmp_ge_u32 s2, 256
    s_cbranch_scc1 L_end_{name}
    s_load_dwordx2 s[4:5], s[0:1], 16
    s_load_dwordx2 s[6:7], s[0:1], 48
    s_load_dwordx2 s[40:41], s[0:1], 64
    s_load_dwordx2 s[42:43], s[0:1], 80
    v_and_b32 v{L}, 63, v0
    v_lshrrev_b32 v{T0}, 6, v0
    v_readfirstlane_b32 s{sW}, v{T0}
    s_and_b32 s{sT}, s2, 7
    s_lshr_b32 s48, s2, 3
    s_lshr_b32 s{sRB}, s{sT}, 1
    s_lshl_b32 s{sRB}, s{sRB}, 2
    s_and_b32 s49, s48, 3
    s_add_u32 s{sRB}, s{sRB}, s49
    s_and_b32 s{sCB}, s{sT}, 1
    s_lshl_b32 s{sCB}, s{sCB}, 3
    s_lshr_b32 s49, s48, 2
    s_add_u32 s{sCB}, s{sCB}, s49
    s_and_b32 s{sTT}, s{sW}, 3
    s_lshr_b32 s{sBR}, s{sW}, 2
    v_lshlrev_b32 v{L16}, 4, v{L}
    s_waitcnt lgkmcnt(0)
    """)
    srd(A, 20, 42, 43, 0x10000000)
    srd(A, 12, 40, 41, 0x400000)
    if stamp: A("s_memtime s[60:61]")
    A(f"""
    s_cmp_eq_u32 s{sBR}, 0
    s_cselect_b32 s24, s4, s6
    s_cselect_b32 s25, s5, s7
    s_mov_b32 s26, 0x200000
    s_mov_b32 s27, 0x20000
    s_lshl_b32 s48, s{sRB}, 2
    s_add_u32 s48, s48, s{sTT}
    s_lshl_b32 s{sOC}, s48, 17
    s_lshl_b32 s49, s{sBR}, 16
    s_add_u32 s{sOC}, s{sOC}, s49
    s_add_u32 s{sOC}, s{sOC}, {WS_OC}
    s_lshl_b32 s{sM0w}, s{sW}, 11
    s_mov_b32 s{sKW}, 0
    v_lshrrev_b32 v{T0}, 3, v{L}
    s_lshl_b32 s48, s{sTT}, 4
    v_add_u32 v{T0}, s48, v{T0}
    v_lshlrev_b32 v{T0}, 11, v{T0}
    v_and_b32 v{T1}, 7, v{L}
    v_bfe_u32 v{T2}, v{L}, 4, 1
    v_lshlrev_b32 v{T2}, 2, v{T2}
    v_xor_b32 v{T1}, v{T1}, v{T2}
    v_lshl_add_u32 v{T0}, v{T1}, 4, v{T0}
    s_lshl_b32 s48, s{sCB}, 7
    v_add_u32 v{vOffW}, s48, v{T0}
    v_add_u32 v{vOffW+1}, {16384 - 1024}, v{vOffW}
    """)
    def dmaW(st):
        return [f"s_add_u32 m0, s{sM0w}, {(st % NS3) * SLOT3}", "s_nop 0",
                f"buffer_load_dwordx4 v{vOffW}, s[24:27], s{sKW} offen lds",
                f"buffer_load_dwordx4 v{vOffW+1}, s[24:27], s{sKW} offen offset:1024 lds",
                f"s_add_u32 s{sKW}, s{sKW}, {64*2048}"]
    def ldOC(st, s):
        d = OC + 16 * (st % 4) + 4 * s
        o = (st * 4 + s) * 1024
        return [f"s_add_u32 s48, s{sOC}, {o & ~0xfff}", f"buffer_load_dwordx4 v[{d}:{d+3}], v{L16}, s[20:23], s48 offen offset:{o & 0xfff}"]
    for vs in range(-7, 0):
        for l in dmaW(vs + 7): A(l)
        if vs >= -4:
            for s in range(4):
                for l in ldOC(vs + 4, s): A(l)
    A(f"""
    v_lshrrev_b32 v{T0}, 5, v{L}
    v_lshlrev_b32 v{T0}, 2, v{T0}
    v_bfe_u32 v{T1}, v{L}, 2, 2
    v_add_u32 v{T0}, v{T0}, v{T1}
    v_lshlrev_b32 v{T0}, 7, v{T0}
    v_bfe_u32 v{T1}, v{L}, 4, 1
    v_lshlrev_b32 v{T1}, 1, v{T1}
    v_bfe_u32 v{T2}, v{L}, 1, 1
    v_or_b32 v{T1}, v{T1}, v{T2}
    v_bfe_u32 v{T2}, v{L}, 3, 1
    v_lshlrev_b32 v{T2}, 2, v{T2}
    v_xor_b32 v{T1}, v{T1}, v{T2}
    v_lshl_add_u32 v{T0}, v{T1}, 4, v{T0}
    v_and_b32 v{T1}, 1, v{L}
    v_lshl_add_u32 v{T0}, v{T1}, 3, v{T0}
    s_lshl_b32 s48, s{sBR}, 13
    v_add_u32 v{vA[0]}, s48, v{T0}
    v_xor_b32 v{vA[1]}, 64, v{vA[0]}
    v_add_u32 v{vA[2]}, 65536, v{vA[0]}
    v_add_u32 v{vA[3]}, 65536, v{vA[1]}
    """)
    for k in range(32): A(f"v_mov_b32 v{ACC+k}, 0")
    def wreads(st, s, buf):
        slot = st % NS3
        out = []
        for ch in range(2):
            a = vA[ch + (2 if slot >= 4 else 0)]
            o = (slot % 4) * SLOT3 + s * 2048
            d = WF[buf] + 4 * ch
            out += [f"ds_read_b64_tr_b16 v[{d}:{d+1}], v{a} offset:{o}", f"ds_read_b64_tr_b16 v[{d+2}:{d+3}], v{a} offset:{o+1024}"]
        return out
    def cnt(s): return (2 if s <= NST - NS3 else 0) + (4 if s <= NST - 5 else 0)
    for st in range(NST):
        vm = sum(cnt(s) if s >= 0 else 6 for s in (st-3, st-2, st-1))
        A(f"s_waitcnt vmcnt({vm})\ns_barrier")
        if st == 0 and stamp: A("s_memtime s[62:63]")
        if st + NS3 - 1 <= NST - 1:
            for l in dmaW(st + NS3 - 1): A(l)
        for l in wreads(st, 0, 0): A(l)
        for s in range(4):
            if s < 3:
                for l in wreads(st, s + 1, (s + 1) & 1): A(l)
                A("s_waitcnt lgkmcnt(4)")
            else:
                A("s_waitcnt lgkmcnt(0)")
            b = OC + 16 * (st % 4) + 4 * s
            for ch in range(2):
                a = WF[s & 1] + 4 * ch
                A(f"v_mfma_f32_32x32x16_bf16 v[{ACC+16*ch}:{ACC+16*ch+15}], v[{a}:{a+3}], v[{b}:{b+3}], v[{ACC+16*ch}:{ACC+16*ch+15}]")
            if st + 4 <= NST - 1:
                for l in ldOC(st + 4, s): A(l)
    if stamp: A("s_memtime s[64:65]")
    A(f"s_barrier\ns_lshl_b32 s48, s{sW}, 12\nv_add_u32 v{T0}, s48, v{L16}")
    lb1, lj = f"L_br1_{name}", f"L_join_{name}"
    A(f"s_cmp_eq_u32 s{sBR}, 1\ns_cbranch_scc1 {lb1}")
    for b in range(4): A(f"ds_write_b128 v{T0}, v[{ACC+16+4*b}:{ACC+16+4*b+3}] offset:{1024*b}")
    A(f"s_branch {lj}")
    A.label(lb1)
    for b in range(4): A(f"ds_write_b128 v{T0}, v[{ACC+4*b}:{ACC+4*b+3}] offset:{1024*b}")
    for k in range(16): A(f"v_mov_b32 v{ACC+k}, v{ACC+16+k}")
    A.label(lj)
    A(f"""
    s_waitcnt lgkmcnt(0)
    s_barrier
    s_xor_b32 s48, s{sW}, 4
    s_lshl_b32 s48, s48, 12
    v_add_u32 v{T0}, s48, v{L16}
    """)
    for b in range(4): A(f"ds_read_b128 v[{OC+4*b}:{OC+4*b+3}], v{T0} offset:{1024*b}")
    A("s_waitcnt lgkmcnt(0)")
    for k in range(16): A(f"v_add_f32 v{ACC+k}, v{ACC+k}, v{OC+k}")
    for k in range(8): A(f"v_cvt_pk_bf16_f32 v{OC+16+k}, v{ACC+2*k}, v{ACC+2*k+1}")
    D = OC + 16
    A(f"""
    v_permlane32_swap_b32 v{D}, v{D+2}
    v_permlane32_swap_b32 v{D+1}, v{D+3}
    v_permlane32_swap_b32 v{D+4}, v{D+6}
    v_permlane32_swap_b32 v{D+5}, v{D+7}
    v_and_b32 v{T0}, 31, v{L}
    s_lshl_b32 s48, s{sRB}, 7
    s_lshl_b32 s49, s{sTT}, 5
    s_add_u32 s48, s48, s49
    v_add_u32 v{T0}, s48, v{T0}
    v_lshlrev_b32 v{T0}, 11, v{T0}
    v_lshrrev_b32 v{T1}, 5, v{L}
    v_lshl_add_u32 v{T0}, v{T1}, 4, v{T0}
    s_lshl_b32 s48, s{sCB}, 7
    s_lshl_b32 s49, s{sBR}, 6
    s_add_u32 s48, s48, s49
    buffer_store_dwordx4 v[{D}:{D+3}], v{T0}, s[12:15], s48 offen
    buffer_store_dwordx4 v[{D+4}:{D+7}], v{T0}, s[12:15], s48 offen offset:32
    """)
    if stamp:
        A("s_waitcnt vmcnt(0)\ns_memtime s[66:67]")
        stamp_out(A, name, L, sW, [60, 62, 64, 66], WS_STAMP + 131072)
    A.label(f"L_end_{name}")
    A("s_endpgm")
    return A.text(), 128, 128
```

```python
import sys
from asmlib import *
from kern1 import *
from kern2 import *
from kern3 import *
from hazard import fix

HEADER = open("gated_mix__softmax_full_mha__linear_kernel_hedgehog__prompt.s.ref").read().split("; Override launch")[0]

def build_text(stamp=False, k1kw={}, k2kw={}, k3kw={}):
    parts = []
    launches = []
    for gen, name, lds, kw in ((gen_k1, "gm_qkv_kernel", LDS1, k1kw), (gen_k2, "gm_attn_kernel", LDS2, k2kw), (gen_k3, "gm_out_kernel", LDS3, k3kw)):
        t, nv, ac = gen(name=name, stamp=stamp, **kw)
        t, n = fix(t)
        parts.append(kernel_header(name) + t + kernel_desc(name, nv, ac))
        launches.append(f"; @launch kernel={name} grid=(256,1,1) block=(512,1,1) lds={lds}")
    return HEADER + "\n".join(launches) + '\n.amdgcn_target "amdgcn-amd-amdhsa--gfx950"\n.text\n' + "\n".join(parts)

if __name__ == "__main__":
    out = sys.argv[1] if len(sys.argv) > 1 else "gated_mix__softmax_full_mha__linear_kernel_hedgehog__prompt.s"
    open(out, "w").write(build_text())
    print("written", out)
```
